```python
import torch

def _softmax(x, axis=-1):
    return torch.softmax(x, dim=axis)
def _gelu(x):
    return torch.nn.functional.gelu(x, approximate="tanh")
def _silu(x):
    return torch.nn.functional.silu(x)
def _sigmoid(x):
    return torch.sigmoid(x)
def _layernorm(x, axis=-1, eps=1e-5):
    m = x.mean(dim=axis, keepdim=True)
    v = x.var(dim=axis, keepdim=True, unbiased=False)
    return (x - m) / torch.sqrt(v + eps)
def _scatter_add(tgt, idx, src, axis=0):
    return tgt.clone().index_add_(axis, idx, src)
def _segment_sum(src, seg, n):
    out = torch.zeros((n,) + src.shape[1:], dtype=src.dtype)
    return out.index_add_(0, seg, src)
def _pad(x, pw):
    flat = tuple(v for pair in reversed(pw) for v in pair)
    return torch.nn.functional.pad(x, flat)

kernel_name = 'standalone__fused_io_aware_attn__prompt'

def setup_inputs():

    _w = (lambda a: (lambda t: t.to(torch.bfloat16) if t.is_floating_point() else t)(torch.as_tensor(a)))
    B, H, S = 1, 16, 4096
    Dh = max(1, 448 // 16)
    return {
        "q": _w((lambda *s: torch.randn(*s, dtype=torch.bfloat16) * 0.8)(B, H, S, Dh)),
        "k": _w((lambda *s: torch.randn(*s, dtype=torch.bfloat16) * 0.8)(B, H, S, Dh)),
        "v": _w((lambda *s: torch.randn(*s, dtype=torch.bfloat16) * 0.05)(B, H, S, Dh)),
    }

def reference(q, k, v):
    scale = q.shape[-1] ** -0.5
    s = torch.einsum('bhqd,bhkd->bhqk', q, k) * scale
    p = _softmax(s, axis=-1)
    return torch.einsum('bhqk,bhkd->bhqd', p, v)
```

```python
import sys, math, struct

NAME = "standalone__fused_io_aware_attn__prompt"

def f32bits(x):
    return struct.unpack("<I", struct.pack("<f", x))[0]

class Gen:
    def __init__(self, **kw):
        self.o = []
        self.p = dict(prio=0, align=6, stamp=0)
        self.p.update(kw)
    def e(self, s):
        self.o.append("    " + s)
    def l(self, s):
        self.o.append(s + ":")
    def c(self, s):
        self.o.append("    ; " + s)

    def build(self):
        p = self.p
        HEADB = 4096 * 56
        SK = 256
        NST = 4096 // SK
        RING = 4
        KSLOT = SK * 64
        VSLOT = SK * 56
        VBASE = RING * KSLOT
        ONES = VBASE + RING * VSLOT
        COMB = ONES + 8192
        FLAG = ONES + 8192 - 64
        LDS = COMB + 32768
        vLane, vIdx, vKa0, vKa1, vVa, vKl, vVl, vVf, vKo, vVo, vT0, vT1, vT2, vT3, vQo = range(1, 16)
        O = [16, 32]
        S = [48, 64, 80, 96]
        C = [112, 128]
        Q = [144, 152]
        K = [160, 168]
        V = [176, 184]
        NV = 192
        def r(b, n): return f"v[{b}:{b+n-1}]"
        sK, sV, sQ, sO = 12, 16, 20, 24
        sW, sQG, sKS, sIt, sG, sKd, sVd, sKr, sVr, sNT, sT0, sT1, sKdW, sVdW, sSlot = range(28, 43)
        e, l, c = self.e, self.l, self.c

        e(f"s_cmp_ge_u32 s2, 256")
        e(f"s_cbranch_scc1 L_end")
        e("s_load_dwordx4 s[4:7], s[0:1], 0")
        e("s_load_dwordx4 s[8:11], s[0:1], 16")
        e(f"v_lshrrev_b32 v{vT0}, 6, v0")
        e(f"v_and_b32 v{vLane}, 63, v0")
        c("head = (wg&7)*2 + (wg>>7), qblk = (wg>>3)&15  (L2 locality only)")
        e(f"s_and_b32 s{sT0}, s2, 7")
        e(f"s_lshl_b32 s{sT0}, s{sT0}, 1")
        e(f"s_lshr_b32 s{sT1}, s2, 7")
        e(f"s_add_u32 s{sT0}, s{sT0}, s{sT1}")
        e(f"v_readfirstlane_b32 s{sW}, v{vT0}")
        e(f"s_mul_i32 s{sT0}, s{sT0}, {HEADB}")
        e(f"s_lshr_b32 s{sT1}, s2, 3")
        e(f"s_and_b32 s{sT1}, s{sT1}, 15")
        e(f"s_mul_i32 s{sT1}, s{sT1}, {256*56}")
        e(f"s_add_u32 s{sT1}, s{sT1}, s{sT0}")
        e(f"s_and_b32 s{sQG}, s{sW}, 3")
        e(f"s_lshr_b32 s{sKS}, s{sW}, 2")
        e(f"s_mov_b32 s{sK+2}, {HEADB}")
        e(f"s_mov_b32 s{sK+3}, 0x00020000")
        e(f"s_mov_b32 s{sV+2}, {HEADB}")
        e(f"s_mov_b32 s{sV+3}, 0x00020000")
        e(f"s_mov_b32 s{sQ+2}, {256*56}")
        e(f"s_mov_b32 s{sQ+3}, 0x00020000")
        e(f"s_mov_b32 s{sO+2}, {256*56}")
        e(f"s_mov_b32 s{sO+3}, 0x00020000")
        c("per-lane row offset 56*(lane&31)+32*(lane>>5): Q load, direct K fragment load, O store")
        e(f"v_and_b32 v{vT0}, 31, v{vLane}")
        e(f"v_mul_u32_u24 v{vQo}, 56, v{vT0}")
        e(f"v_and_b32 v{vT1}, 32, v{vLane}")
        e(f"v_add_u32 v{vQo}, v{vQo}, v{vT1}")
        c("K DMA source offset: 56*(l>>2) + 16*((l&3)^((l>>4)&3)) + w*1792")
        e(f"v_lshrrev_b32 v{vT2}, 2, v{vLane}")
        e(f"v_mul_u32_u24 v{vKo}, 56, v{vT2}")
        e(f"v_lshrrev_b32 v{vT2}, 4, v{vLane}")
        e(f"v_xor_b32 v{vT2}, v{vT2}, v{vLane}")
        e(f"v_and_b32 v{vT2}, 3, v{vT2}")
        e(f"v_lshlrev_b32 v{vT2}, 4, v{vT2}")
        e(f"v_add_u32 v{vKo}, v{vKo}, v{vT2}")
        e(f"s_mul_i32 s{sKdW}, s{sW}, 1792")
        e(f"v_add_u32 v{vKo}, s{sKdW}, v{vKo}")
        c("V DMA source offset: 16*l + min(w,6)*2048")
        e(f"s_min_u32 s{sVdW}, s{sW}, 6")
        e(f"s_lshl_b32 s{sVdW}, s{sVdW}, 11")
        e(f"v_lshlrev_b32 v{vVo}, 4, v{vLane}")
        e(f"v_add_u32 v{vVo}, s{sVdW}, v{vVo}")
        e(f"s_lshl_b32 s{sKdW}, s{sW}, 11")
        e(f"s_add_u32 s{sVdW}, s{sVdW}, {VBASE}")
        e(f"s_mul_i32 s{sG}, s{sQG}, {64*56}")
        e("s_waitcnt lgkmcnt(0)")
        e(f"s_add_u32 s{sQ}, s4, s{sT1}")
        e(f"s_addc_u32 s{sQ+1}, s5, 0")
        e(f"s_add_u32 s{sK}, s6, s{sT0}")
        e(f"s_addc_u32 s{sK+1}, s7, 0")
        e(f"s_add_u32 s{sV}, s8, s{sT0}")
        e(f"s_addc_u32 s{sV+1}, s9, 0")
        e(f"s_add_u32 s{sO}, s10, s{sT1}")
        e(f"s_addc_u32 s{sO+1}, s11, 0")
        c("Q loads (raw bf16) into S[0]/S[1] scratch")
        for a in range(2):
            e(f"buffer_load_dwordx4 {r(S[0]+8*a,4)}, v{vQo}, s[{sQ}:{sQ+3}], s{sG} offen offset:{a*1792}")
            e(f"buffer_load_dwordx4 {r(S[0]+8*a+4,4)}, v{vQo}, s[{sQ}:{sQ+3}], s{sG} offen offset:{a*1792+16}")
        e(f"s_mov_b32 s{sNT}, 1")

        def dma():
            e(f"s_mul_i32 s{sT0}, s{sSlot}, {KSLOT}")
            e(f"s_add_u32 m0, s{sT0}, s{sKdW}")
            e(f"s_mul_i32 s{sT1}, s{sSlot}, {VSLOT}")
            e(f"buffer_load_dwordx4 v{vKo}, s[{sK}:{sK+3}], s{sG} offen lds")
            e(f"s_add_u32 m0, m0, 128")
            e(f"s_add_u32 s{sSlot}, s{sSlot}, 1")
            e(f"buffer_load_dwordx4 v{vKo}, s[{sK}:{sK+3}], s{sG} offen offset:896 lds")
            e(f"s_add_u32 m0, s{sT1}, s{sVdW}")
            e(f"s_and_b32 s{sSlot}, s{sSlot}, {RING-1}")
            e(f"buffer_load_dwordx4 v{vVo}, s[{sV}:{sV+3}], s{sG} offen lds")
            e(f"buffer_load_dwordx4 v{vVo}, s[{sV}:{sV+3}], s{sG} offen offset:1024 lds")
            e(f"s_add_u32 s{sG}, s{sG}, {VSLOT}")
            e(f"s_min_u32 s{sG}, s{sG}, {VSLOT*(NST-1)}")

        def kdirect(soff):
            e(f"buffer_load_dwordx4 {r(K[1],4)}, v{vQo}, s[{sK}:{sK+3}], {soff} offen")
            e(f"buffer_load_dwordx4 {r(K[1]+4,4)}, v{vQo}, s[{sK}:{sK+3}], {soff} offen offset:16")

        def maxtile(first):
            for a in range(2):
                e(f"v_mfma_f32_32x32x16_bf16 {r(S[1+a],16)}, {r(K[1],4)}, {r(Q[a],4)}, 0")
                e(f"v_mfma_f32_32x32x16_bf16 {r(S[1+a],16)}, {r(K[1]+4,4)}, {r(Q[a]+4,4)}, {r(S[1+a],16)}")
            e("s_nop 9")
            for a in range(2):
                m = C[a]
                b = S[1+a]
                if a == 1: e("s_nop 3")
                if first:
                    e(f"v_max3_f32 v{m}, v{b}, v{b+1}, v{b+2}")
                    e(f"v_max_f32 v{m}, v{m}, v{b+3}")
                else:
                    e(f"v_max3_f32 v{m}, v{m}, v{b}, v{b+1}")
                    e(f"v_max3_f32 v{m}, v{m}, v{b+2}, v{b+3}")
                for i in range(4, 16, 2):
                    e(f"v_max3_f32 v{m}, v{m}, v{b+i}, v{b+i+1}")

        kdirect("0")
        e(f"s_mov_b32 s{sG}, 0")
        e(f"s_mov_b32 s{sSlot}, 0")
        for i in range(RING-1): dma()
        c("LDS read address lane parts")
        e(f"v_and_b32 v{vT0}, 31, v{vLane}")
        e(f"v_lshlrev_b32 v{vKl}, 6, v{vT0}")
        e(f"v_lshrrev_b32 v{vT1}, 4, v{vLane}")
        e(f"v_and_b32 v{vT1}, 2, v{vT1}")
        e(f"v_lshrrev_b32 v{vT2}, 2, v{vLane}")
        e(f"v_and_b32 v{vT2}, 3, v{vT2}")
        e(f"v_xor_b32 v{vT1}, v{vT1}, v{vT2}")
        e(f"v_lshlrev_b32 v{vT1}, 4, v{vT1}")
        e(f"v_add_u32 v{vKl}, v{vKl}, v{vT1}")
        e(f"s_lshl_b32 s{sT0}, s{sKS}, 13")
        e(f"v_add_u32 v{vKl}, s{sT0}, v{vKl}")
        e(f"v_lshrrev_b32 v{vT0}, 5, v{vLane}")
        e(f"v_lshlrev_b32 v{vT0}, 3, v{vT0}")
        e(f"v_add_u32 v{vT0}, v{vT0}, v{vT2}")
        e(f"v_mul_u32_u24 v{vVl}, 56, v{vT0}")
        e(f"v_and_b32 v{vT0}, 1, v{vLane}")
        e(f"v_lshlrev_b32 v{vT0}, 5, v{vT0}")
        e(f"v_add_u32 v{vVl}, v{vVl}, v{vT0}")
        e(f"v_and_b32 v{vT0}, 2, v{vLane}")
        e(f"v_lshlrev_b32 v{vT0}, 2, v{vT0}")
        e(f"v_add_u32 v{vVl}, v{vVl}, v{vT0}")
        e(f"v_and_b32 v{vT0}, 16, v{vLane}")
        e(f"v_add_u32 v{vVl}, v{vVl}, v{vT0}")
        e(f"s_mul_i32 s{sT0}, s{sKS}, {128*56}")
        e(f"s_add_u32 s{sT0}, s{sT0}, {VBASE}")
        e(f"v_add_u32 v{vVl}, s{sT0}, v{vVl}")
        c("lanes with (l&19)==19 read the all-ones region instead (row sum column)")
        e(f"v_and_b32 v{vT0}, 19, v{vLane}")
        e(f"v_cmp_eq_u32 vcc, 19, v{vT0}")
        e(f"v_lshrrev_b32 v{vT1}, 5, v{vLane}")
        e(f"v_mul_u32_u24 v{vT1}, 448, v{vT1}")
        e(f"v_add_u32 v{vT1}, {ONES+224}, v{vT1}")
        e(f"v_cndmask_b32 v{vVl}, v{vVl}, v{vT1}, vcc")
        e(f"v_cndmask_b32 v{vVf}, 1, 0, vcc")
        e(f"v_mov_b32 v{vIdx}, 0xdddddddd")
        c("fill the ones region: wave w writes 1 KB")
        e(f"v_lshlrev_b32 v{vT0}, 4, v0")
        e(f"v_add_u32 v{vT0}, {ONES}, v{vT0}")
        for i in range(4): e(f"v_mov_b32 v{V[0]+i}, 0x3f803f80")
        e(f"ds_write_b128 v{vT0}, {r(V[0],4)}")
        c("scale Q by log2(e)/sqrt(28), round to bf16; zero the 4 pad slots")
        e(f"s_mov_b32 s{sT0}, 0x{f32bits(math.log2(math.e)/math.sqrt(28.0)):08x}")
        e(f"s_waitcnt vmcnt({2+4*(RING-1)})")
        e(f"v_cmp_gt_u32 vcc, 32, v{vLane}")
        for a in range(2):
            for i in range(8):
                s = S[0] + 8*a + i
                e(f"v_lshlrev_b32 v{vT0+(i&1)*2}, 16, v{s}")
                e(f"v_and_b32 v{vT1+(i&1)*2}, 0xffff0000, v{s}")
                e(f"v_mul_f32 v{vT0+(i&1)*2}, s{sT0}, v{vT0+(i&1)*2}")
                e(f"v_mul_f32 v{vT1+(i&1)*2}, s{sT0}, v{vT1+(i&1)*2}")
                e(f"v_cvt_pk_bf16_f32 v{Q[a]+i}, v{vT0+(i&1)*2}, v{vT1+(i&1)*2}")
            e(f"v_cndmask_b32 v{Q[a]+6}, 0, v{Q[a]+6}, vcc")
            e(f"v_cndmask_b32 v{Q[a]+7}, 0, v{Q[a]+7}, vcc")
        e(f"s_waitcnt vmcnt({4*(RING-1)})")
        e("s_branch L_max0")

        l("L_restart")
        c("slow path entry: redo everything with the true row max")
        kdirect("0")
        e(f"s_mov_b32 s{sG}, 0")
        e(f"s_mov_b32 s{sSlot}, 0")
        for i in range(RING-1): dma()
        e(f"s_waitcnt vmcnt({4*(RING-1)})")
        l("L_max0")
        maxtile(True)
        e(f"s_cmp_eq_u32 s{sNT}, 1")
        e(f"s_cbranch_scc1 L_maxdone")
        e(f"s_mov_b32 s{sIt}, 1792")
        l("L_maxloop")
        kdirect(f"s{sIt}")
        e("s_waitcnt vmcnt(0)")
        maxtile(False)
        e(f"s_add_u32 s{sIt}, s{sIt}, 1792")
        e(f"s_cmp_lt_u32 s{sIt}, {HEADB}")
        e(f"s_cbranch_scc1 L_maxloop")
        l("L_maxdone")
        for a in range(2):
            e(f"v_mov_b32 v{C[a]+1}, v{C[a]}")
        e("s_nop 1")
        for a in range(2):
            e(f"v_permlane32_swap_b32 v{C[a]}, v{C[a]+1}")
        e("s_nop 1")
        for a in range(2):
            e(f"v_max_f32 v{C[a]}, v{C[a]}, v{C[a]+1}")
        for a in range(2):
            e(f"v_sub_f32 v{C[a]}, 0, v{C[a]}")
        for a in range(2):
            for i in range(1, 16): e(f"v_mov_b32 v{C[a]+i}, v{C[a]}")
        for a in range(2):
            for i in range(16): e(f"v_mov_b32 v{O[a]+i}, 0")
        for i in range(16): e(f"v_mov_b32 v{S[3]+i}, 0")
        for i in range(8): e(f"v_mov_b32 v{V[1]+i}, 0")
        e(f"v_mov_b32 v{vKa0}, v{vKl}")
        e(f"v_xor_b32 v{vKa1}, 16, v{vKl}")
        e(f"v_mov_b32 v{vVa}, v{vVl}")
        e(f"s_mov_b32 s{sKr}, 0")
        e(f"s_mov_b32 s{sVr}, 0")
        e(f"s_mov_b32 s{sIt}, {NST}")
        e(f"s_waitcnt vmcnt({4*(RING-2)}) lgkmcnt(0)")
        e("s_barrier")

        def kread(buf, tile):
            return [f"ds_read_b128 {r(K[buf],4)}, v{vKa0} offset:{tile*2048}",
                    f"ds_read_b128 {r(K[buf]+4,4)}, v{vKa1} offset:{tile*2048}"]
        def vread(buf, tile):
            return [f"ds_read_b64_tr_b16 {r(V[buf]+2*j,2)}, v{vVa} offset:{tile*1792 + (j&1)*224 + (j>>1)*896}" for j in range(4)]
        def qk(u):
            a, t = u & 1, (u >> 1)
            d = r(S[u & 3], 16)
            return [f"v_mfma_f32_32x32x16_bf16 {d}, {r(K[t&1],4)}, {r(Q[a],4)}, {r(C[a],16)}",
                    f"v_mfma_f32_32x32x16_bf16 {d}, {r(K[t&1]+4,4)}, {r(Q[a]+4,4)}, {d}"]
        def pv(u):
            a, t = u & 1, (u >> 1)
            return [f"v_smfmac_f32_32x32x32_bf16 {r(O[a],16)}, {r(V[t&1],4)}, {r(S[u&3],8)}, v{vIdx}",
                    f"v_smfmac_f32_32x32x32_bf16 {r(O[a],16)}, {r(V[t&1]+4,4)}, {r(S[u&3]+8,8)}, v{vIdx}"]

        c("pipeline prologue")
        for x in kread(0, 0): e(x)
        for x in kread(1, 1) + vread(0, 0): e(x)
        e("s_waitcnt lgkmcnt(6)")
        for x in qk(0): e(x)
        e("s_nop 7")
        e("s_nop 3")
        NT = 4
        self.o.append(f".p2align {p['align']}")
        l("L_loop")
        for u in range(2 * NT):
            c(f"step {u}")
            t = (u + 1) >> 1
            extra = [[] for _ in range(16)]
            pre = []
            if u & 1:
                pre.append("s_waitcnt lgkmcnt(0)")
                rd = kread((t+1) & 1, (t+1) % NT) + vread(t & 1, t % NT)
                pos = [1, 3, 5, 7, 9, 11]
                for x, q in zip(rd, pos): extra[q].append(x)
            if u == 4:
                extra[1] += [f"s_add_u32 s{sKr}, s{sKr}, {KSLOT}", f"s_and_b32 s{sKr}, s{sKr}, {RING*KSLOT-1}"]
                extra[2] += [f"s_waitcnt vmcnt({4*(RING-3)})", "s_barrier"]
                extra[3] += [f"v_add_u32 v{vKa0}, s{sKr}, v{vKl}"]
                extra[5] += [f"v_xor_b32 v{vKa1}, 16, v{vKa0}"]
                save = self.o; self.o = []
                dma()
                d = [x.strip() for x in self.o]; self.o = save
                grp = []; cur = []
                for x in d:
                    cur.append(x)
                    if x.startswith("buffer_load"): grp.append(cur); cur = []
                grp[-1] += cur
                for g, q in zip(grp, [6, 9, 11, 13]): extra[q] += g
            if u == 6:
                extra[1] += [f"s_add_u32 s{sVr}, s{sVr}, {VSLOT}", f"s_cmp_eq_u32 s{sVr}, {RING*VSLOT}", f"s_cselect_b32 s{sVr}, 0, s{sVr}"]
                extra[5] += [f"v_mad_u32_u24 v{vVa}, v{vVf}, s{sVr}, v{vVl}"]
            if u == 2 * NT - 1:
                extra[13] += [f"s_sub_u32 s{sIt}, s{sIt}, 1", f"s_cmp_lg_u32 s{sIt}, 0"]
            mf = qk(u + 1) + pv(u - 1 + 8)
            for x in pre: e(x)
            for i in range(16):
                if i % 4 == 0: e(mf[i // 4])
                e(f"v_exp_f32 v{S[u&3]+i}, v{S[u&3]+i}")
                for x in extra[i]: e(x)
        e("s_cbranch_scc1 L_loop")
        e("s_nop 1")
        for x in pv(7): e(x)
        c("safety check of the stand-in max: partial row sums must stay <= 2^30 (also rejects inf/nan)")
        e(f"s_mov_b32 s{sT0}, 0x{f32bits(2.0**30):08x}")
        e(f"v_lshlrev_b32 v{vT0}, 4, v{vLane}")
        e(f"s_lshl_b32 s{sT1}, s{sW}, 12")
        e(f"s_add_u32 s{sT1}, s{sT1}, {COMB}")
        e(f"v_add_u32 v{vT0}, s{sT1}, v{vT0}")
        e(f"v_xor_b32 v{vT1}, {4<<12}, v{vT0}")
        e(f"s_lshl_b32 s{sT1}, s{sW}, 2")
        e(f"s_add_u32 s{sT1}, s{sT1}, {FLAG}")
        e(f"v_mov_b32 v{vT2}, s{sT1}")
        e("s_waitcnt lgkmcnt(0)")
        e("s_nop 7")
        e(f"v_cmp_nle_f32 vcc, v{O[0]+12}, s{sT0}".replace(f"v{O[0]+12}, s{sT0}", f"v{O[0]+12}, v{vT3}") if False else f"v_cmp_nge_f32 vcc, s{sT0}, v{O[0]+12}")
        e(f"v_cmp_nge_f32 s[44:45], s{sT0}, v{O[1]+12}")
        e("s_nop 1")
        e("s_or_b32 s44, vcc_hi, s45")
        e(f"v_mov_b32 v{vT3}, s44")
        e(f"ds_write_b32 v{vT2}, v{vT3}")
        c("exchange partials: wave ks keeps q-tile ks, hands the other one over")
        e(f"s_cmp_eq_u32 s{sKS}, 0")
        e(f"s_cbranch_scc1 L_x0")
        for j in range(4): e(f"ds_write_b128 v{vT0}, {r(O[0]+4*j,4)} offset:{1024*j}")
        e("s_nop 1")
        for i in range(16): e(f"v_mov_b32 v{O[0]+i}, v{O[1]+i}")
        e("s_branch L_x1")
        l("L_x0")
        for j in range(4): e(f"ds_write_b128 v{vT0}, {r(O[1]+4*j,4)} offset:{1024*j}")
        l("L_x1")
        e(f"v_mov_b32 v{vT2}, {FLAG}")
        e("s_waitcnt lgkmcnt(0)")
        e("s_barrier")
        e(f"ds_read_b128 {r(S[1],4)}, v{vT2}")
        e(f"ds_read_b128 {r(S[1]+4,4)}, v{vT2} offset:16")
        for j in range(4): e(f"ds_read_b128 {r(S[0]+4*j,4)}, v{vT1} offset:{1024*j}")
        e("s_waitcnt lgkmcnt(4)")
        e(f"v_or3_b32 v{S[1]}, v{S[1]}, v{S[1]+1}, v{S[1]+2}")
        e(f"v_or3_b32 v{S[1]}, v{S[1]}, v{S[1]+3}, v{S[1]+4}")
        e(f"v_or3_b32 v{S[1]}, v{S[1]}, v{S[1]+5}, v{S[1]+6}")
        e(f"v_or_b32 v{S[1]}, v{S[1]}, v{S[1]+7}")
        e("s_nop 0")
        e(f"v_readfirstlane_b32 s{sT0}, v{S[1]}")
        e(f"s_cmp_eq_u32 s{sNT}, 1")
        e(f"s_cselect_b32 s{sT0}, s{sT0}, 0")
        e(f"s_cmp_eq_u32 s{sT0}, 0")
        e(f"s_cbranch_scc1 L_fin")
        e(f"s_mov_b32 s{sNT}, 128")
        e("s_waitcnt vmcnt(0) lgkmcnt(0)")
        e("s_barrier")
        e("s_branch L_restart")
        l("L_fin")
        e("s_waitcnt lgkmcnt(0)")
        for i in range(16): e(f"v_add_f32 v{O[0]+i}, v{O[0]+i}, v{S[0]+i}")
        e(f"v_mov_b32 v{vT0}, v{O[0]+12}")
        e(f"v_mov_b32 v{vT1}, v{O[0]+12}")
        e(f"s_mul_i32 s{sT0}, s{sQG}, {64*56}")
        e(f"s_mul_i32 s{sT1}, s{sKS}, {32*56}")
        e(f"v_permlane32_swap_b32 v{vT0}, v{vT1}")
        e(f"s_add_u32 s{sT0}, s{sT0}, s{sT1}")
        e("s_nop 0")
        e(f"v_rcp_f32 v{vT1}, v{vT1}")
        e("s_nop 0")
        for i in range(16): e(f"v_mul_f32 v{O[0]+i}, v{vT1}, v{O[0]+i}")
        for i in range(8): e(f"v_cvt_pk_bf16_f32 v{S[0]+i}, v{O[0]+2*i}, v{O[0]+2*i+1}")
        e(f"buffer_store_dwordx4 {r(S[0],4)}, v{vQo}, s[{sO}:{sO+3}], s{sT0} offen")
        e(f"buffer_store_dwordx2 {r(S[0]+4,2)}, v{vQo}, s[{sO}:{sO+3}], s{sT0} offen offset:16")
        e("s_mov_b32 exec_hi, 0")
        e(f"buffer_store_dwordx2 {r(S[0]+6,2)}, v{vQo}, s[{sO}:{sO+3}], s{sT0} offen offset:24")
        l("L_end")
        e("s_endpgm")

        hdr = open("cdna_kernels/" + NAME + ".s.ref").read().split("\n")
        head = []
        for ln in hdr:
            if ln.startswith("; @launch"):
                head.append(f"; @launch grid=(256,1,1) block=(512,1,1) lds={LDS}")
            elif ln.startswith(";"):
                head.append(ln)
            else:
                break
        out = "\n".join(head) + "\n"
        out += f""".amdgcn_target "amdgcn-amd-amdhsa--gfx950"
.text
.globl {NAME}_kernel
.p2align 8
.type {NAME}_kernel,@function
{NAME}_kernel:
"""
        out += "\n".join(self.o) + "\n"
        out += f""".section .rodata,"a"
.p2align 6
.amdhsa_kernel {NAME}_kernel
  .amdhsa_next_free_vgpr {NV}
  .amdhsa_next_free_sgpr 48
  .amdhsa_accum_offset {NV}
  .amdhsa_group_segment_fixed_size 0
  .amdhsa_kernarg_size 48
  .amdhsa_user_sgpr_count 2
  .amdhsa_user_sgpr_kernarg_segment_ptr 1
  .amdhsa_system_sgpr_workgroup_id_x 1
.end_amdhsa_kernel
"""
        return out

if __name__ == "__main__":
    kw = {}
    outp = "cdna_kernels/" + NAME + ".s"
    for a in sys.argv[1:]:
        k, v = a.split("=")
        if k == "out": outp = v
        else: kw[k] = int(v)
    open(outp, "w").write(Gen(**kw).build())
```
